```python
import torch

def _softmax(x, axis=-1):
    return torch.softmax(x, dim=axis)
def _gelu(x):
    return torch.nn.functional.gelu(x, approximate="tanh")
def _silu(x):
    return torch.nn.functional.silu(x)
def _sigmoid(x):
    return torch.sigmoid(x)
def _layernorm(x, axis=-1, eps=1e-5):
    m = x.mean(dim=axis, keepdim=True)
    v = x.var(dim=axis, keepdim=True, unbiased=False)
    return (x - m) / torch.sqrt(v + eps)
def _scatter_add(tgt, idx, src, axis=0):
    return tgt.clone().index_add_(axis, idx, src)
def _segment_sum(src, seg, n):
    out = torch.zeros((n,) + src.shape[1:], dtype=src.dtype)
    return out.index_add_(0, seg, src)
def _pad(x, pw):
    flat = tuple(v for pair in reversed(pw) for v in pair)
    return torch.nn.functional.pad(x, flat)

kernel_name = 'recurrent_scan__mha_block_cached__swiglu_ffn__decode'

def setup_inputs():

    _w = (lambda a: (lambda t: t.to(torch.bfloat16) if t.is_floating_point() else t)(torch.as_tensor(a)))
    def _A_setup():
        B, Sq, D = 2, 1, 576
        H, Sk, Dh = 32, 8192, 128
        return {
            "x": _w((lambda *s: torch.randn(*s, dtype=torch.bfloat16) * 0.05)(B, Sq, D)),
            "k_cache": _w((lambda *s: torch.randn(*s, dtype=torch.bfloat16) * 1.6)(B, H, Sk, Dh)),
            "v_cache": _w((lambda *s: torch.randn(*s, dtype=torch.bfloat16) * 0.2)(B, H, Sk, Dh)),
            "wq": _w((lambda *s: torch.randn(*s, dtype=torch.bfloat16) * 1.6)(D, H * Dh) * (D ** -0.5)),
            "wo": _w((lambda *s: torch.randn(*s, dtype=torch.bfloat16) * 0.2)(H * Dh, D) * ((H * Dh) ** -0.5)),
        }
    _A_in = _A_setup()

    def _B_setup():
        B, S, D, F = 2, 1, 576, 4608
        return {
            "x": _w((lambda *s: torch.randn(*s, dtype=torch.bfloat16) * 0.05)(B, S, D)),
            "w_gate": _w((lambda *s: torch.randn(*s, dtype=torch.bfloat16) * 0.1)(D, F)),
            "w_up": _w((lambda *s: torch.randn(*s, dtype=torch.bfloat16) * 0.1)(D, F)),
            "w_down": _w((lambda *s: torch.randn(*s, dtype=torch.bfloat16) * 0.1)(F, D)),
        }
    _B_in = _B_setup()

    return {
        "A_x": _A_in["x"],
        "A_k_cache": _A_in["k_cache"],
        "A_v_cache": _A_in["v_cache"],
        "A_wq": _A_in["wq"],
        "A_wo": _A_in["wo"],
        "B_x": _B_in["x"],
        "B_w_gate": _B_in["w_gate"],
        "B_w_up": _B_in["w_up"],
        "B_w_down": _B_in["w_down"],
    }

def reference(A_x, A_k_cache, A_v_cache, A_wq, A_wo, B_x, B_w_gate, B_w_up, B_w_down):
    def _A_ref(x, k_cache, v_cache, wq, wo):
        B, Sq, D = x.shape
        H, Dh = 32, 128
        q = (lambda x, *d: x.permute(*d))((x @ wq).reshape(B, Sq, H, Dh), 0, 2, 1, 3)
        scores = torch.einsum("bhqd,bhkd->bhqk", q, k_cache) * (Dh ** -0.5)
        p = _softmax(scores, axis=-1)
        o = torch.einsum("bhqk,bhkd->bhqd", p, v_cache)
        return (lambda x, *d: x.permute(*d))(o, 0, 2, 1, 3).reshape(B, Sq, H * Dh) @ wo

    def _B_ref(x, w_gate, w_up, w_down):
        g = _silu(x @ w_gate)
        u = x @ w_up
        return (g * u) @ w_down

    x = A_x
    xn = _layernorm(x, axis=-1)
    s = _A_ref(xn, A_k_cache, A_v_cache, A_wq, A_wo)
    g = _silu(_B_ref(xn, B_w_gate, B_w_up, B_w_down))
    return x + s * g
```

```python
import re
TRANS = ("v_exp_f32", "v_log_f32", "v_rcp_f32", "v_rsq_f32", "v_sqrt_f32", "v_sin_f32", "v_cos_f32", "v_rcp_iflag_f32")
def regs_of(tok):
    tok = tok.strip()
    tok = re.sub(r"^-|^\||\|$", "", tok)
    m = re.fullmatch(r"abs\((.*)\)", tok)
    if m: tok = m.group(1)
    m = re.fullmatch(r"([vsa])(\d+)", tok)
    if m: return {(m.group(1), int(m.group(2)))}
    m = re.fullmatch(r"([vsa])\[(\d+):(\d+)\]", tok)
    if m: return {(m.group(1), i) for i in range(int(m.group(2)), int(m.group(3)) + 1)}
    if tok == "vcc": return {("s", "vcc")}
    if tok in ("vcc_lo", "vcc_hi"): return {("s", "vcc")}
    if tok in ("exec", "exec_lo", "exec_hi"): return {("s", "exec")}
    if tok == "m0": return {("s", "m0")}
    return set()
class Ins:
    def __init__(self, text):
        self.text = text
        t = text.split(";")[0].strip()
        self.is_label = t.endswith(":")
        self.is_dir = t.startswith(".") or t == ""
        self.op = ""; self.w = set(); self.r = set(); self.ops = []
        if self.is_label or self.is_dir: return
        parts = t.split(None, 1)
        self.op = op = parts[0]
        rest = parts[1] if len(parts) > 1 else ""
        ops = [o.strip() for o in re.split(r",(?![^\[]*\])", rest)]
        clean = []
        for o in ops:
            clean.append(o.split()[0] if o else o)
        self.ops = clean
        self.dpp = ("_dpp" in op) or any(k in rest for k in ("quad_perm", "row_shr", "row_shl", "row_ror", "row_bcast", "row_newbcast", "row_mirror", "row_half_mirror"))
        self.mfma = op.startswith("v_mfma")
        self.valu = op.startswith("v_") and not self.mfma
        self.vmem = op.startswith(("buffer_", "global_", "flat_"))
        self.ds = op.startswith("ds_")
        self.salu = op.startswith("s_")
        self.trans = any(op.startswith(x) for x in TRANS)
        self.perml = op.startswith("v_permlane")
        self.rdlane = op.startswith(("v_readlane", "v_readfirstlane", "v_writelane"))
        R = [regs_of(o) for o in clean]
        if self.mfma:
            self.w = R[0]; self.ra = R[1] | R[2]; self.rc = R[3] if len(R) > 3 else set(); self.r = self.ra | self.rc
            self.passes = 8 if "32x32" in op else 4
        elif self.valu:
            if self.perml:
                self.w = R[0] | R[1]; self.r = R[0] | R[1]
            elif op.startswith(("v_add_co", "v_sub_co", "v_addc_co", "v_subb_co", "v_div_scale", "v_mad_u64_u32")):
                self.w = R[0] | R[1]; self.r = set().union(*R[2:])
            else:
                self.w = R[0]; self.r = set().union(*R[1:]) if len(R) > 1 else set()
                if op.startswith(("v_fmac", "v_dot2c", "v_writelane")) or self.dpp: self.r |= R[0]
                if op.startswith("v_cndmask") and len(R) == 3: self.r |= {("s", "vcc")}
                if op.startswith("v_cmpx"): self.w |= {("s", "exec")}
        elif self.vmem:
            if "store" in op or "atomic" in op:
                self.r = set().union(*R)
                self.store_wide = ("x3" in op or "x4" in op)
                self.sdata = R[1] if op.startswith("global_") else R[0]
                if "atomic" in op and " sc0" in t: self.w = R[0]
            else:
                self.w = R[0]; self.r = set().union(*R[1:])
        elif self.ds:
            if "read" in op or "bpermute" in op or "permute" in op or "swizzle" in op:
                self.w = R[0]; self.r = set().union(*R[1:])
            else:
                self.r = set().union(*R)
        elif self.salu:
            if op.startswith(("s_cmp", "s_cbranch", "s_branch", "s_waitcnt", "s_nop", "s_barrier", "s_sleep", "s_endpgm", "s_setprio", "s_setpc")):
                self.r = set().union(*R) if R else set()
            else:
                self.w = R[0] if R else set(); self.r = set().union(*R[1:]) if len(R) > 1 else set()
                if "saveexec" in op: self.w |= {("s", "exec")}
    def states(self):
        if self.is_label or self.is_dir: return 0
        if self.op == "s_nop": return int(self.ops[0], 0) + 1
        return 1
def need(prod, cons):
    n = 0
    pv = {x for x in prod.w if x[0] in "va"}; ps = {x for x in prod.w if x[0] == "s"}
    if prod.valu:
        if cons.mfma and pv & cons.r: n = max(n, 2)
        if cons.valu and cons.dpp and pv & cons.r: n = max(n, 2)
        if cons.valu and cons.perml and pv & cons.r: n = max(n, 2)
        if cons.valu and cons.rdlane and pv & cons.r: n = max(n, 1)
        if prod.trans and cons.valu and pv & cons.r: n = max(n, 1)
        if prod.trans and cons.mfma and pv & cons.r: n = max(n, 2)
        if ps:
            if cons.valu and ps & cons.r: n = max(n, 4 if cons.rdlane else 2)
            if cons.vmem and ps & cons.r: n = max(n, 5)
            if ("s", "exec") in ps:
                if cons.valu and cons.dpp: n = max(n, 5)
                if cons.mfma or (cons.valu and (cons.rdlane or cons.perml)): n = max(n, 4)
            if cons.salu and ps & cons.r: n = max(n, 1)
    if prod.mfma:
        big = {4: 8, 8: 12}[prod.passes]; ovl = {4: 6, 8: 10}[prod.passes]; war = {4: 3, 8: 7}[prod.passes]
        if cons.mfma:
            if pv & cons.ra: n = max(n, big)
            if pv & cons.rc and not (cons.rc == pv and cons.passes == prod.passes): n = max(n, ovl)
            if pv & cons.w and not (pv & cons.rc) : n = max(n, ovl)
        elif cons.valu or cons.vmem or cons.ds:
            if pv & (cons.r | cons.w): n = max(n, big)
        if cons.valu and prod.rc & cons.w: n = max(n, war)
    if prod.vmem and getattr(prod, "store_wide", False) and (cons.valu or cons.mfma) and prod.sdata & cons.w: n = max(n, 2)
    if prod.salu and ("s", "m0") in prod.w and cons.vmem and " lds" in cons.text: n = max(n, 1)
    return n
def hazard_pass(lines, window=24):
    out = []
    for text in lines:
        c = Ins(text)
        if not (c.is_label or c.is_dir):
            req = 0; dist = 0
            for p in reversed(out[-window*2:]):
                if p.is_label or p.is_dir: continue
                k = need(p, c)
                if k > dist: req = max(req, k - dist)
                dist += p.states()
                if dist > 20: break
            while req > 0:
                k = min(req, 16)
                out.append(Ins(f"s_nop {k-1}")); req -= k
        out.append(c)
    return [i.text for i in out]

def cfg_fix(lines, maxit=50):
    total = 0
    for it in range(maxit):
        ins = [Ins(t) for t in lines]
        n = len(ins)
        lab = {ins[i].text.strip()[:-1]: i for i in range(n) if ins[i].is_label}
        preds = [[] for _ in range(n)]
        for i, c in enumerate(ins):
            ends = c.op in ("s_branch", "s_endpgm")
            if not ends and i + 1 < n: preds[i + 1].append(i)
            if c.op.startswith(("s_branch", "s_cbranch")) and c.ops and c.ops[0] in lab: preds[lab[c.ops[0]]].append(i)
        fixes = {}
        for i, c in enumerate(ins):
            if c.is_label or c.is_dir: continue
            best = {}
            stack = [(p, 0) for p in preds[i]]
            req = 0
            while stack:
                p, d = stack.pop()
                if best.get(p, 99) <= d: continue
                best[p] = d
                q = ins[p]
                if not (q.is_label or q.is_dir):
                    k = need(q, c)
                    if k > d: req = max(req, k - d)
                d2 = d + q.states()
                if d2 < 13: stack += [(pp, d2) for pp in preds[p]]
            if req: fixes[i] = req
        if not fixes: return lines, total
        out = []
        for i, t in enumerate(lines):
            if i in fixes: out.append(f"s_nop {fixes[i]-1}"); total += 1
            out.append(t)
        lines = out
    raise RuntimeError("cfg_fix did not converge")
```

```python
import struct, sys
from asmlib import hazard_pass, cfg_fix
KN = "recurrent_scan__mha_block_cached__swiglu_ffn__decode_kernel"
def f32(x): return "0x%08x" % struct.unpack("<I", struct.pack("<f", x))[0]
LOG2E = 1.4426950408889634
SCALE = 128 ** -0.5
OA = 0
YB = 0x80000
EP = 0xB0000
FB = 0xC0000
QW = 0x120000
WS_BYTES = 0x1A0000
LCG_A, LCG_C = 1664525, 1013904223
XT2 = 0x02020202
QL, ML, OP, YP, QP, XT, HT = 0, 512, 1024, 4096, 8192, 16384, 20992
FP = 22528
RK = 772
SM = 768
KL = 8192
OOB = "0x80000000"
SPIN = 1 << 18
NSL = 147
NG = 37
HEADER = open("recurrent_scan__mha_block_cached__swiglu_ffn__decode.s.ref").read().split("; Override launch")[0]

DOC = """
; ---------------------------------------------------------------------------------------------
; One launch, 256 workgroups of 8 waves, one per CU.  wg -> head h = (wg>>6)*8 + (wg&7), role k = (wg>>3)&7.
;  k < 7 : attention workgroup.  Waves 0-3 stream K then V of head h (waves 0,1 batch 0; 2,3 batch 1); wave
;          j = 2k + (w&1) owns the 4-key blocks j, j+14, j+28, ...  Scores: K block as MFMA A operand against
;          q placed block-diagonally; P.V: V block as B operand against p times an identity pattern.  While q
;          is being produced the K stream runs ahead into registers.  Waves 4-7 (helpers) do the rest: at the
;          start they pull the FFN weights of this head's service workgroup into the L2 (loads whose data is
;          dropped), layernorm + a 72-row slice of the q projection, later the softmax statistics exchange, the
;          publication of the normalised o partial, and a 64-column slice of o @ wo.  Streams on even XCDs keep
;          fewer loads in flight than on odd ones (the even die of a pair otherwise starves its neighbour).
;  k == 7: service workgroup.  Sums the 8 q partials of head h, runs 2-3 of the 72 FFN column tasks
;          (gate/up -> silu*up -> down), projects the last 128 columns of o @ wo and hosts the final reducers
;          (out = x + s * silu(ffn)).
; Hand-offs between workgroups go through d_ws and validate themselves: every launch derives a fresh 32-bit tag
; from the epoch word it finds in d_ws (and stores the tag there when it ends); each 16-byte granule carries the
; tag (one byte in the low byte of each f32, or whole words next to packed data).  Stores are write-through
; (sc1) unless producer and all consumers were seen to share one XCD (ids compared through d_debug), in which
; case they stay in that L2.  s_sleep appears only as back-off inside polling loops; every poll is bounded.
; ---------------------------------------------------------------------------------------------
""".strip("\n")

def make_table(kind):
    T = [None]*256
    if kind == "head":
        for wg in range(256): T[wg] = ((wg >> 6)*8 + (wg & 7))*8 + ((wg >> 3) & 7)
    elif kind == "spread":
        for wg in range(256):
            h = wg >> 3; T[wg] = h*8 + ((wg + h) & 7)
    elif kind.startswith("svc"):
        ne, no = int(kind[3]), int(kind[4])
        assert 4*(ne + no) == 32
        per = {x: [wg for wg in range(256) if wg & 7 == x] for x in range(8)}
        svc = []; att = []
        for x in range(8):
            n = ne if x % 2 == 0 else no
            svc += per[x][32-n:]
        pool = {x: per[x][:32-(ne if x % 2 == 0 else no)] for x in range(8)}
        left = []
        for x in range(8):
            units = [(hh*8 + x)*8 + k for hh in range(4) for k in range(7)]
            for u in units:
                if pool[x]: T[pool[x].pop(0)] = u
                else: left.append(u)
        rest = [wg for x in range(8) for wg in pool[x]]
        assert len(rest) == len(left)
        for wg, u in zip(rest, left): T[wg] = u
        where = kind[5] if len(kind) > 5 else "a"
        byx = {x: [wg for wg in svc if wg & 7 == x] for x in range(8)}
        order = []
        if where == "a": first = list(range(8))
        elif where == "e": first = [0, 2, 4, 6, 0, 2, 4, 6]
        else: first = [1, 3, 5, 7, 1, 3, 5, 7]
        for x in first: order.append(byx[x].pop(0))
        rem = list(range(8, 32))
        asg = {}
        for h in rem:
            if byx[h & 7]: asg[h] = byx[h & 7].pop(0)
        restw = [wg for x in range(8) for wg in byx[x]]
        for h in rem:
            if h not in asg: asg[h] = restw.pop(0)
        for h in range(8): T[order[h]] = h*8 + 7
        for h in rem: T[asg[h]] = h*8 + 7
    return T

def gen(RING=40, D=7, INIT=None, CU=6, DT=None, stamps=False, diag=None, polK="nt", polQ="nt", polF="nt", polO="nt", FR=10,
        sleepS=2, sleepQ=8, mapping="head", noffn=False, B0=True, K0=4, DP=None, polQS='sc1', polQL='sc1', ackstamp=False, NL=0, NST=3, strip=0, kperm=True, table=None, DE=6, DEk=2, qd_s=0, qd_a=0, mllate=120, Fpre=True, probeS=True, sleepF=64, sleepP=8, pipeA=0, pipeB=3, stag=0, sleepA=0, linA=True, mltail=False, qtrig=12, wo64=True, Flate=True, polOut='', touchOut=False, wo_late=False, lay='G0', noinit=False, polInit='sc1', probe_fix=0, probe_xcc=False, Fpub_late=False, fast=True, touchY=None, force_slow=False, polYS='sc1', polYL='sc1', Dend=10, iend=110, nofpub=False, DEstart=0, vtouch=0, wo_first=True, pf='', pfD=None, rk=None, rk_lead=2, rk_lag=4, rk_ms=(135,), rk_mid=0, rk_end=None, rk_per=12, hint=True, boB=None, boS=8):
    if isinstance(table, str): table = make_table(table)
    L = []; a = L.append
    vTag, vS23 = 252, 253
    assert B0 and Fpre and probeS and mllate and not mltail and not strip and wo64 and Flate
    NF = 4
    ACC = [20, 24, 28, 36, 40]
    DT = DT or D + 3
    DP = DP or D
    INIT = INIT or DP
    def vr(b, n=4): return f"v[{b}:{b+n-1}]"
    def stamp(k, who=None):
        if not stamps: return
        if diag and who == "s" and k in diag.values(): return
        a(f"s_memrealtime s[{80+2*k}:{81+2*k}]")
    def ev(name):
        if diag and name in diag: a(f"s_memrealtime s[{80+2*diag[name]}:{81+2*diag[name]}]")
    def bf16r(dst, src):
        a(f"v_cvt_pk_bf16_f32 {dst}, {src}, {src}"); a(f"v_and_b32 {dst}, 0xffff0000, {dst}")
    DPPF = "row_mask:0xf bank_mask:0xf"
    def wave_reduce(v, op, rors=(8, 4, 2, 1), half=False):
        for k in rors: a(f"{op}_dpp {v}, {v}, {v} row_ror:{k} {DPPF}")
        a(f"{op}_dpp {v}, {v}, {v} row_bcast:15 row_mask:0xa bank_mask:0xf")
        if not half: a(f"{op}_dpp {v}, {v}, {v} row_bcast:31 row_mask:0xc bank_mask:0xf")
    def oct_reduce(regs, op):
        for pat in ("quad_perm:[1,0,3,2]", "quad_perm:[2,3,0,1]", "row_half_mirror"):
            for v in regs: a(f"{op}_dpp {v}, {v}, {v} {pat} {DPPF}")
    def srd(s, lo, hi, nrec):
        if lo != f"s{s}": a(f"s_mov_b32 s{s}, {lo}")
        if hi != f"s{s+1}": a(f"s_mov_b32 s{s+1}, {hi}")
        a(f"s_mov_b32 s{s+2}, {nrec}"); a(f"s_mov_b32 s{s+3}, 0x20000")
    def masks():
        a("v_and_b32 v4, 1, v0"); a("v_lshlrev_b32 v4, 4, v4"); a("v_mov_b32 v5, 0xffff"); a("v_lshlrev_b32 v4, v4, v5")
        a("v_bfe_u32 v5, v0, 1, 2")
        for r in range(4):
            a(f"v_cmp_eq_u32 vcc, {r}, v5"); a(f"v_cndmask_b32 v{16+r}, 0, v4, vcc")
    def ln2_offsets(vx, vx3):
        a("v_and_b32 v4, 31, v0"); a("v_lshrrev_b32 v5, 5, v0"); a("v_mul_u32_u24 v5, 1152, v5"); a(f"v_lshl_add_u32 {vx}, v4, 4, v5")
        a("v_cmp_gt_u32 vcc, 8, v4"); a(f"v_mov_b32 v5, {OOB}"); a(f"v_cndmask_b32 {vx3}, v5, {vx}, vcc")
    def ln2_stats(X, F, acc, tmp, mean):
        for k in range(12):
            a(f"v_lshlrev_b32 v{F+2*k}, 16, v{X+k}"); a(f"v_and_b32 v{F+2*k+1}, 0xffff0000, v{X+k}")
        a(f"v_add_f32 v{acc}, v{F}, v{F+1}"); a(f"v_add_f32 v{tmp}, v{F+2}, v{F+3}")
        for k in range(4, 24, 2):
            a(f"v_add_f32 v{acc}, v{acc}, v{F+k}"); a(f"v_add_f32 v{tmp}, v{tmp}, v{F+k+1}")
        a(f"v_add_f32 v{acc}, v{acc}, v{tmp}")
        wave_reduce(f"v{acc}", "v_add_f32", half=True)
        a(f"v_mul_f32 v{acc}, {f32(1/576)}, v{acc}")
        a(f"v_readlane_b32 s72, v{acc}, 31"); a(f"v_readlane_b32 s75, v{acc}, 63")
        a(f"v_mov_b32 v{mean}, s72"); a("s_mov_b32 exec_lo, 0"); a(f"v_mov_b32 v{mean}, s75"); a("s_mov_b32 exec_lo, -1")
        a(f"v_sub_f32 v{tmp}, v{F}, v{mean}"); a(f"v_mul_f32 v{acc}, v{tmp}, v{tmp}")
        for k in range(1, 16):
            a(f"v_sub_f32 v{tmp}, v{F+k}, v{mean}"); a(f"v_fmac_f32 v{acc}, v{tmp}, v{tmp}")
        a("s_mov_b32 exec_lo, 0xff"); a("s_mov_b32 exec_hi, 0xff")
        for k in range(16, 24):
            a(f"v_sub_f32 v{tmp}, v{F+k}, v{mean}"); a(f"v_fmac_f32 v{acc}, v{tmp}, v{tmp}")
        a("s_mov_b64 exec, -1")
        bf16r(f"v{mean}", f"v{mean}")
        wave_reduce(f"v{acc}", "v_add_f32", half=True)
        a(f"v_mul_f32 v{acc}, {f32(1/576)}, v{acc}")
        bf16r(f"v{acc}", f"v{acc}")
        a(f"v_add_f32 v{acc}, {f32(1e-5)}, v{acc}")
        bf16r(f"v{acc}", f"v{acc}")
        a(f"v_sqrt_f32 v{acc}, v{acc}")
        bf16r(f"v{acc}", f"v{acc}")
        a(f"v_rcp_f32 v{tmp}, v{acc}")
        a(f"v_readlane_b32 s72, v{mean}, 31"); a(f"v_readlane_b32 s75, v{mean}, 63")
        a(f"v_readlane_b32 s73, v{acc}, 31"); a(f"v_readlane_b32 s76, v{acc}, 63")
        a(f"v_readlane_b32 s74, v{tmp}, 31"); a(f"v_readlane_b32 s77, v{tmp}, 63")
    def normalize(v, t0, t1, mb, sd, rs):
        a(f"v_subrev_f32 {v}, {mb}, {v}")
        bf16r(v, v)
        a(f"v_mul_f32 {t0}, {rs}, {v}")
        a(f"v_fma_f32 {t1}, -{t0}, {sd}, {v}")
        a(f"v_fma_f32 {t0}, {t1}, {rs}, {t0}")
        a(f"v_cvt_pk_bf16_f32 {v}, {t0}, {t0}")
    def silu(v, t0, t1):
        a(f"v_mul_f32 {t0}, {f32(-LOG2E)}, {v}"); a(f"v_exp_f32 {t0}, {t0}"); a(f"v_add_f32 {t0}, 1.0, {t0}")
        a(f"v_rcp_f32 {t1}, {t0}")
        a(f"v_mul_f32 {v}, {v}, {t1}")
    def anysent(regs, t):
        regs = list(regs)
        if len(regs) == 2: a(f"v_max_u32 {t}, v{regs[0]}, v{regs[1]}"); k = 2
        else: a(f"v_max3_u32 {t}, v{regs[0]}, v{regs[1]}, v{regs[2]}"); k = 3
        while k + 1 < len(regs):
            a(f"v_max3_u32 {t}, {t}, v{regs[k]}, v{regs[k+1]}"); k += 2
        if k < len(regs): a(f"v_max_u32 {t}, {t}, v{regs[k]}")
        a(f"v_cmp_eq_u32 vcc, -1, {t}")
    def tagcheck(regs):
        for i, r in enumerate(regs): a(f"v_xor_b32 v{4+i}, s96, v{r}")
        if len(regs) == 2: a("v_or_b32 v4, v4, v5")
        else: a("v_or3_b32 v4, v4, v5, v6"); a("v_or_b32 v4, v4, v7")
        a("v_cmp_ne_u32 vcc, 0, v4")
    def mktag():
        a(f"s_mul_i32 s96, s96, {LCG_A}"); a(f"s_add_u32 s96, s96, {LCG_C}")
        a("s_and_b32 s3, s96, 0xff"); a("s_mul_i32 s3, s3, 0x01010101"); a("s_cmp_eq_u32 s3, s96"); a("s_cselect_b32 s3, 0x100, 0"); a("s_xor_b32 s96, s96, s3")
        a(f"v_mov_b32 v{vTag}, s96")
        for r in range(4): a(f"s_mov_b32 s{60+r}, {0x07060500 + r}")
        a("s_mov_b32 s97, 0x0c0c0400"); a(f"v_mov_b32 v{vS23}, 0x04000c0c")
    def tag4(b):
        for r in range(4): a(f"v_perm_b32 v{b+r}, v{b+r}, v{vTag}, s{60+r}")
    def check4(bases, lanes=None):
        for i, b in enumerate(bases):
            a(f"v_perm_b32 v5, v{b+1}, v{b}, s97"); a(f"v_perm_b32 v7, v{b+3}, v{b+2}, v{vS23}")
            if i == 0: a("v_or_b32 v4, v5, v7"); a(f"v_xor_b32 v4, v4, v{vTag}")
            else: a("v_or_b32 v5, v5, v7"); a(f"v_xor_b32 v5, v5, v{vTag}"); a("v_or_b32 v4, v4, v5")
        a("v_cmp_ne_u32 vcc, 0, v4")
        if lanes: a(f"s_and_b64 vcc, vcc, {lanes}")
    nst = [0]
    def store2(text, cond):
        if not fast: a(text + " sc1"); return
        nst[0] += 1; k = nst[0]
        a(f"s_cmp_lg_u32 {cond}, 0"); a(f"s_cbranch_scc1 L_st{k}a")
        a(text + " sc1"); a(f"s_branch L_st{k}b")
        a(f"L_st{k}a:"); a(text); a(f"L_st{k}b:")
    def strip_(dst, src): a(f"v_and_b32 v{dst}, 0xffffff00, v{src}")
    def poll(lbl, loads, check, sleep=0, ok=None, first_sleep=False, wait="s_waitcnt vmcnt(0)"):
        ok = ok or f"{lbl}_ok"
        a(f"s_mov_b32 s79, {SPIN}")
        a(f"{lbl}:")
        if sleep and first_sleep: a(f"s_sleep {sleep}")
        for x in loads: a(x)
        a(wait)
        check()
        a(f"s_cbranch_vccz {ok}")
        if sleep and not first_sleep: a(f"s_sleep {sleep}")
        a("s_sub_u32 s79, s79, 1"); a(f"s_cbranch_scc0 {lbl}")
        if ok == f"{lbl}_ok": a(f"{ok}:")
        else: a(f"s_branch {ok}")
    def ppoll(lbl, mk, nreg, base, sets, first, chk, sleep=0, bo=None):
        nl = len(mk(base))
        regs = [base + nreg*i for i in range(sets)]
        a(f"s_mov_b32 s79, {SPIN}")
        for i in range(sets - 1):
            for x in mk(regs[i]): a(x)
            if stag: a(f"s_sleep {stag}")
        a(f"{lbl}:")
        for i in range(sets):
            for x in mk(regs[(i + sets - 1) % sets]): a(x)
            a(f"s_waitcnt vmcnt({nl*(sets-1)})")
            chk(regs[i])
            a(f"s_cbranch_vccz {lbl}_g{i}")
        if sleep: a(f"s_sleep {sleep}")
        if bo:
            a("s_bcnt1_i32_b64 s3, vcc"); a(f"s_cmp_le_u32 s3, {bo}"); a(f"s_cbranch_scc1 {lbl}_nb"); a(f"s_sleep {boS}"); a(f"{lbl}_nb:")
        a("s_sub_u32 s79, s79, 1"); a(f"s_cbranch_scc0 {lbl}")
        for i in range(sets):
            a(f"{lbl}_g{i}:")
            first(regs[i])
            if i < sets - 1: a(f"s_branch {lbl}_ok")
        a(f"{lbl}_ok:")
        a("s_nop 1")
    def spin_init(lbl):
        def chk(): a(f"v_cmp_gt_u32 vcc, {NINIT}, v4")
        poll(lbl, [f"buffer_load_dword v4, v{vZ}, s[60:63], 0 offen sc1"], chk, sleep=8)
    def store_stamps(idx_add):
        if not stamps: return
        a("s_waitcnt lgkmcnt(0)")
        a(f"s_add_u32 s64, s26, {256<<20}"); a("s_addc_u32 s65, s27, 0"); a("s_mov_b32 s66, 0x100000"); a("s_mov_b32 s67, 0x20000")
        a(f"s_lshl_b32 s3, s2, 8"); a(f"s_add_u32 s3, s3, {idx_add*64}")
        a("s_mov_b64 exec, 1"); a("v_mov_b32 v1, 0")
        for k in range(4):
            for m in range(4): a(f"v_mov_b32 v{4+m}, s{80+4*k+m}")
            a(f"buffer_store_dwordx4 v[4:7], v1, s[64:67], s3 offen offset:{16*k}")
            a("s_nop 1")
        a("s_waitcnt vmcnt(0)")
    class Log:
        def __init__(s): s.l = []
        def vm(s, tag, text): a(text); s.l.append(tag)
        def wait(s, tag):
            k = len(s.l) - 1 - s.l.index(tag); assert k <= 63; a(f"s_waitcnt vmcnt({k})")

    a(".text"); a(f".globl {KN}"); a(".p2align 8"); a(f".type {KN},@function"); a(f"{KN}:")
    a("s_cmp_ge_u32 s2, 256"); a("s_cbranch_scc1 L_end")
    a("s_load_dwordx16 s[4:19], s[0:1], 0")
    a("s_load_dwordx8 s[20:27], s[0:1], 64")
    if table is not None:
        a("s_getpc_b64 s[30:31]"); a("L_pc0:"); a("s_lshl_b32 s3, s2, 2"); a("s_add_u32 s3, s3, L_map-L_pc0"); a("s_add_u32 s30, s30, s3"); a("s_addc_u32 s31, s31, 0")
        a("s_load_dword s29, s[30:31], 0")
    if stamps:
        for k in range(80, 96): a(f"s_mov_b32 s{k}, 0")
    stamp(0)
    if probe_fix: a("s_memrealtime s[92:93]")
    a("v_lshrrev_b32 v1, 6, v0"); a("v_and_b32 v0, 63, v0")
    a("v_readfirstlane_b32 s28, v1")
    if table is None: a("s_and_b32 s29, s2, 7")
    if table is not None:
        a("s_waitcnt lgkmcnt(0)"); a("s_lshr_b32 s32, s29, 3"); a("s_and_b32 s32, s32, 31"); a("s_and_b32 s33, s29, 7")
    elif mapping == "head":
        a("s_lshr_b32 s32, s2, 6"); a("s_lshl_b32 s32, s32, 3"); a("s_add_u32 s32, s32, s29")
    else:
        a("s_lshr_b32 s32, s2, 6"); a("s_lshl_b32 s29, s29, 2"); a("s_add_u32 s32, s32, s29")
    if table is None: a("s_bfe_u32 s33, s2, 0x30003")
    a("v_lshrrev_b32 v2, 4, v0"); a("v_and_b32 v3, 15, v0")
    a("s_cmp_ge_u32 s28, 4"); a("s_cbranch_scc1 L_helper")
    a("s_cmp_eq_u32 s33, 7"); a("s_cbranch_scc1 L_svc_lo")

    vK, vV, vL2E, vT = 6, 7, 8, 9
    QB = 40; RB = 56; S = 216
    assert RB + 4*RING <= S and S + NG <= 256
    a("s_lshr_b32 s31, s28, 1"); a("s_and_b32 s30, s28, 1")
    if DE: a("s_getreg_b32 s97, hwreg(HW_REG_XCC_ID)")
    if rk: a("s_and_b32 s72, s97, 1"); a("s_xor_b32 s72, s72, 1"); a(f"s_add_u32 s72, s72, {1 + rk_mid}"); a("s_lshl_b32 s97, 1, s72"); a("s_sub_u32 s97, s97, 1")
    if lay == 'G0':
        STEP = 14*1024
        a("s_lshl_b32 s71, s33, 1"); a("s_add_u32 s71, s71, s30")
        a("s_lshl_b32 s34, s71, 10")
        a(f"v_bfe_u32 v4, v0, 2, 2"); a("v_and_b32 v5, 3, v0")
        a("v_lshlrev_b32 v4, 8, v4"); a("v_lshlrev_b32 v5, 4, v5"); a("v_lshl_add_u32 v10, v2, 6, v5")
        a(f"v_add3_u32 v{vK}, v4, v10, s34")
        a(f"v_lshl_add_u32 v{vV}, v0, 4, s34")
        a("s_lshl_b32 s34, s31, 5"); a("s_add_u32 s34, s34, s32"); a("s_lshl_b32 s34, s34, 21")
        a(f"s_mov_b32 s38, {2 << 20}"); a("s_mov_b32 s39, 0x20000"); a("s_mov_b32 s68, 0")
    else:
        STEP = 2048
        a("s_lshl_b32 s34, s30, 10")
        a(f"v_bfe_u32 v4, v0, 2, 2"); a("v_and_b32 v5, 3, v0")
        a("v_lshlrev_b32 v4, 8, v4"); a("v_lshlrev_b32 v5, 4, v5"); a("v_lshl_add_u32 v10, v2, 6, v5")
        a(f"v_add3_u32 v{vK}, v4, v10, s34")
        if not kperm: a(f"v_lshl_add_u32 v{vK}, v0, 4, s34")
        a(f"v_lshl_add_u32 v{vV}, v0, 4, s34")
        magic = (1 << 32) // 7 + 1
        a("s_lshl_b32 s34, s33, 11"); a(f"s_mov_b32 s35, {magic}"); a("s_mul_hi_u32 s3, s34, s35"); a("s_addk_i32 s34, 0x800"); a("s_mul_hi_u32 s34, s34, s35")
        a("s_sub_u32 s71, s34, s3")
        a("s_lshl_b32 s34, s31, 5"); a("s_add_u32 s34, s34, s32"); a("s_lshl_b32 s34, s34, 11"); a("s_add_u32 s34, s34, s3"); a("s_lshl_b32 s34, s34, 10")
        a("s_lshl_b32 s38, s71, 10"); a("s_mov_b32 s39, 0x20000"); a("s_mov_b32 s68, 0")
    a("s_waitcnt lgkmcnt(0)")
    a("s_add_u32 s36, s6, s34"); a("s_addc_u32 s37, s7, 0")
    lg = Log(); nkv = [0]
    PRE = RING + NL
    LDS_BYTES = max(FP + 15360, KL + 4*NL*1024)
    assert LDS_BYTES <= 160*1024
    free = list(range(RING)); slot = {}
    def issue_kv():
        n = nkv[0]; nkv[0] += 1
        if rk and n >= 6 and not (Dend and n >= NSL + iend):
            a("s_bitcmp1_b32 s97, 0"); a(f"s_cbranch_scc0 L_de{n}"); a("s_waitcnt vmcnt(6)")
            a(f"s_bitcmp1_b32 s97, {1 + (n & 1)}"); a(f"s_cbranch_scc0 L_de{n}"); a("s_waitcnt vmcnt(5)")
            if not n & 1: a("s_bitcmp1_b32 s97, 3"); a(f"s_cbranch_scc0 L_de{n}"); a("s_waitcnt vmcnt(4)")
            a(f"L_de{n}:")
        elif DE and n >= max(DE, DEstart) and n % DEk == 0 and not (Dend and n >= NSL + iend):
            a("s_bitcmp0_b32 s97, 0"); a(f"s_cbranch_scc0 L_de{n}"); a(f"s_waitcnt vmcnt({DE-1})"); a(f"L_de{n}:")
        if RING <= n < PRE:
            j = n - RING
            if j == 0: a(f"s_mul_i32 s3, s28, {NL*1024}"); a(f"s_add_u32 m0, s3, {KL}"); a(f"v_lshl_add_u32 v1, v0, 4, s3")
            else: a("s_add_u32 m0, m0, 1024")
            lg.vm(n, f"buffer_load_dwordx4 v{vK}, s[36:39], s68 offen {polK} lds"); a(f"s_addk_i32 s68, {STEP}")
            return
        slot[n] = free.pop(0)
        r = RB + 4*slot[n]
        if n < NSL:
            lg.vm(n, f"buffer_load_dwordx4 {vr(r)}, v{vK}, s[36:39], s68 offen {polK}"); a(f"s_addk_i32 s68, {STEP}")
        else:
            lg.vm(n, f"buffer_load_dwordx4 {vr(r)}, v{vV}, s[40:43], s69 offen {polK}"); a(f"s_addk_i32 s69, {STEP}")
    ev("args")
    for _ in range(K0): issue_kv()
    if B0: a("s_barrier")
    ev("b0")
    for _ in range(INIT - K0): issue_kv()
    a("s_add_u32 s40, s8, s34"); a("s_addc_u32 s41, s9, 0"); a("s_mov_b32 s42, s38"); a("s_mov_b32 s43, 0x20000"); a("s_mov_b32 s69, 0")
    masks()
    a(f"v_mov_b32 v{vL2E}, {f32(LOG2E)}")
    a("s_lshl_b32 s3, s31, 8"); a("v_add_u32 v10, s3, v10")
    a("v_and_b32 v4, 1, v2"); a("v_lshlrev_b32 v4, 4, v4"); a("v_lshl_add_u32 v11, v3, 5, v4")
    a("s_lshl_b32 s3, s28, 9"); a("v_add_u32 v11, s3, v11")
    a("s_lshl_b32 s3, s28, 3"); a("v_mov_b32 v12, s3")
    a("v_bfe_u32 v13, v0, 2, 2")
    dep = INIT
    while nkv[0] < PRE:
        lg.wait(nkv[0] - dep); ev(f"land{nkv[0]-dep}")
        if qtrig and nkv[0] == PRE - qtrig:
            a("s_mov_b32 exec_hi, 0"); a("s_mov_b32 exec_lo, 1"); a(f"ds_write_b32 v12, v12 offset:{ML + 64}"); a("s_mov_b64 exec, -1")
        issue_kv()
        if dep < DP and nkv[0] < PRE: issue_kv(); dep += 1
    a("s_barrier")
    a(f"ds_read_b128 v[20:23], v10 offset:{QL}")
    a("s_waitcnt lgkmcnt(0)")
    for t in range(4):
        a(f"v_cmp_eq_u32 vcc, {t}, v13")
        for r in range(4): a(f"v_cndmask_b32 v{QB+4*t+r}, 0, v{20+r}, vcc")
    stamp(1, "s")
    def score(u):
        Dd = 24 + 4*(u & 1); s = S + u
        a(f"v_mov_b32_dpp v{s}, v{Dd} quad_perm:[0,0,0,0] {DPPF}")
        a(f"v_mov_b32_dpp v{vT}, v{Dd+2} quad_perm:[2,2,2,2] {DPPF}")
        a(f"v_add_f32_dpp v{s}, v{Dd+1}, v{s} quad_perm:[1,1,1,1] {DPPF}")
        a(f"v_add_f32_dpp v{vT}, v{Dd+3}, v{vT} quad_perm:[3,3,3,3] {DPPF}")
        a(f"v_add_f32 v{s}, v{s}, v{vT}")
        bf16r(f"v{s}", f"v{s}")
        a(f"v_mul_f32 v{s}, {f32(SCALE)}, v{s}")
        bf16r(f"v{s}", f"v{s}")
        if u == 0: a(f"v_mov_b32 v14, v{s}")
        elif u < NG - 1: a(f"v_max_f32 v14, v14, v{s}")
    def rk_read(): a(f"v_mov_b32 v5, 0"); a(f"ds_read_b32 v4, v5 offset:{RK}")
    def rk_use():
        a("s_waitcnt lgkmcnt(0)"); a("v_readfirstlane_b32 s3, v4"); a("s_add_u32 s3, s72, s3"); a("s_lshl_b32 s97, 1, s3"); a("s_sub_u32 s97, s97, 1")
    def rk_hooks(n):
        if not rk: return
        if n in rk_ms:
            a("s_mov_b32 exec_hi, 0"); a("s_mov_b32 exec_lo, 1"); a(f"v_mov_b32 v5, {rk_ms.index(n)}"); a(f"ds_write_b32 v12, v5 offset:{ML + 96}"); a("s_mov_b64 exec, -1")
        last = NSL + (rk_end or iend)
        if rk_ms[0] + 8 <= n < last - 1 and (n - rk_ms[0] - 8) % rk_per == 0: rk_read()
        if rk_ms[0] + 9 <= n < last and (n - rk_ms[0] - 9) % rk_per == 0: rk_use()
        if rk_end and n == last: a("s_lshl_b32 s97, 1, s72"); a("s_sub_u32 s97, s97, 1")
    def topup(n, depth):
        while nkv[0] < min(2*NSL, n + 1 + depth): issue_kv()
    staged = [RING]
    dsq = []
    def stage():
        m = staged[0]
        if m >= PRE: return
        staged[0] += 1
        if m > waited[0]: lg.wait(m); waited[0] = m
        slot[m] = free.pop(0)
        a(f"ds_read_b128 {vr(RB+4*slot[m])}, v1 offset:{KL + 1024*(m-RING)}"); dsq.append(m)
    waited = [PRE - 1 - dep]
    for n in range(NSL):
        u, t = n >> 2, n & 3
        Dd = 24 + 4*(u & 1)
        if NL and n >= RING - NST:
            while staged[0] < min(PRE, n + 1 + NST): stage()
        if n in dsq:
            a(f"s_waitcnt lgkmcnt({len(dsq) - 1 - dsq.index(n)})")
        elif n > waited[0]:
            lg.wait(n); waited[0] = n
        ev(f"cons{n}")
        a(f"v_mfma_f32_16x16x32_bf16 {vr(Dd)}, {vr(RB+4*slot[n])}, {vr(QB+4*t)}, {'0' if t == 0 else vr(Dd)}")
        free.append(slot[n])
        if nkv[0] > n + 1 + D:
            if (n + 1) % CU == 0:
                if nkv[0] - D > waited[0]: lg.wait(nkv[0] - D); waited[0] = nkv[0] - D
                issue_kv()
        topup(n, D if n < NSL-1 else DT)
        rk_hooks(n)
        if t == 1 and u > 0: score(u - 1)
    score(NG - 1)
    if lay == 'G0':
        a("s_add_u32 s34, s71, 2016"); a("v_mul_u32_u24 v4, 14, v13"); a("v_add_u32 v4, s34, v4"); a("s_movk_i32 s71, 2048")
    else:
        a("s_add_u32 s34, s30, 288"); a("v_lshl_add_u32 v4, v13, 1, s34")
    a("v_cmp_gt_u32 vcc, s71, v4"); a("v_mov_b32 v5, 0xff800000"); a(f"v_cndmask_b32 v{S+NG-1}, v5, v{S+NG-1}, vcc")
    stamp(3, "s")
    a(f"v_max_f32 v14, v14, v{S+NG-1}")
    wave_reduce("v14", "v_max_f32", rors=(8, 4))
    a(f"v_mul_f32 v14, v14, v{vL2E}")
    a("v_readlane_b32 s75, v14, 63")
    def softmax(u):
        a(f"v_fma_f32 v{S+u}, v{S+u}, v{vL2E}, -s75"); a(f"v_exp_f32 v{S+u}, v{S+u}")
        if u == 0: a(f"v_mov_b32 v15, v{S+u}")
        else: a(f"v_add_f32 v15, v15, v{S+u}")
        a(f"v_cvt_pk_bf16_f32 v{S+u}, v{S+u}, v{S+u}")
    softmax(0)
    nsm = 1
    for n in range(NSL, 2*NSL):
        i = n - NSL; u, t = i >> 2, i & 3
        A = 32 + 4*(n & 1)
        for r in range(4): a(f"v_and_b32_dpp v{A+r}, v{S+u}, v{16+r} row_newbcast:{4*t} {DPPF}")
        lg.wait(n); ev(f"cons{n}")
        a(f"v_mfma_f32_16x16x32_bf16 v[20:23], {vr(A)}, {vr(RB+4*slot[n])}, {'0' if i == 0 else 'v[20:23]'}")
        free.append(slot[n])
        topup(n, Dend if Dend and i >= iend else D)
        rk_hooks(n)
        if mllate and i == mllate:
            a("s_mov_b32 exec_hi, 0"); a("s_mov_b32 exec_lo, 1"); a(f"ds_write_b32 v12, v12 offset:{ML + 32}"); a("s_mov_b64 exec, -1")
        if nsm < NG:
            softmax(nsm); nsm += 1
            if nsm == NG:
                wave_reduce("v15", "v_add_f32", rors=(8, 4))
                a("v_min_u32 v14, -2, v14"); a("v_min_u32 v15, -2, v15")
                a("s_mov_b32 exec_lo, 0"); a("s_mov_b32 exec_hi, 0x80000000")
                a(f"ds_write_b64 v12, v[14:15] offset:{ML}")
                a("s_mov_b64 exec, -1")
    a("s_mov_b32 exec_hi, 0")
    a(f"ds_write_b128 v11, v[20:23] offset:{OP}")
    a("s_waitcnt lgkmcnt(0)"); a("s_barrier")
    stamp(4, "s")
    a("s_barrier")
    if stamps:
        a("s_cmp_eq_u32 s28, 0"); a("s_cbranch_scc0 L_end"); store_stamps(0)
    a("s_endpgm")

    vZ, vL16, vL8, vWO, vGA, vYS, vYP, vC0, vC1 = 240, 241, 242, 243, 244, 245, 246, 247, 248
    vG, vX, vOA, vGM, vNI, vSA, vSB = 232, 236, 249, 250, 251, 254, 255
    WQ = 64; LNF = 140; WO = 176
    CW = 64
    def wo_addr():
        if wo64: a("s_cmp_eq_u32 s33, 7"); a("s_cselect_b32 s69, 16, 8")
        else: a("s_mov_b32 s69, 9")
        a("s_mul_i32 s34, s32, 147456"); a(f"s_mul_i32 s35, s33, {2*CW}"); a("s_add_u32 s34, s34, s35")
        a("s_add_u32 s52, s12, s34"); a("s_addc_u32 s53, s13, 0"); a("s_sub_u32 s54, 147456, s35"); a("s_mov_b32 s55, 0x20000")
        a("s_lshl_b32 s34, s30, 5"); a("v_lshl_add_u32 v4, v2, 3, s34")
        a(f"v_mul_u32_u24 v5, 1152, v4"); a("v_lshl_add_u32 v5, v3, 4, v5")
        a("v_cmp_gt_u32 vcc, s69, v3"); a(f"v_mov_b32 v10, {OOB}"); a(f"v_cndmask_b32 v{vWO}, v10, v5, vcc")
        a("s_mov_b32 s67, 4608")
    def wo_loads():
        for t in range(8):
            a(f"buffer_load_dwordx4 {vr(WO+4*t)}, v{vWO}, s[52:55], {'0' if t < 4 else 's67'} offen offset:{1152*(t%4)} {polO}")
    a("L_helper:")
    if strip == 1:
        a("s_cmp_eq_u32 s33, 7"); a("s_cbranch_scc1 L_end")
        if B0: a("s_barrier")
        a("s_barrier"); a("s_barrier"); a("s_barrier"); a("s_endpgm")
    a("s_sub_u32 s30, s28, 4")
    a(f"v_mov_b32 v{vZ}, 0"); a(f"v_lshlrev_b32 v{vL16}, 4, v0"); a(f"v_lshlrev_b32 v{vL8}, 3, v0")
    a("s_mov_b32 s78, 0")
    a("s_lshl_b32 s64, s32, 14")
    a("s_cmp_eq_u32 s30, 0"); a("s_cbranch_scc0 L_h_rest")
    hq = Log()
    ln2_offsets("v8", "v9")
    a("s_mul_i32 s35, s33, 72")
    a("v_lshl_add_u32 v4, v3, 2, v2"); a("v_add_u32 v4, s35, v4"); a("v_lshlrev_b32 v10, 1, v4")
    a("v_lshlrev_b32 v4, 13, v2"); a("v_lshl_add_u32 v11, v3, 4, v4")
    a("s_lshl_b32 s70, s35, 13"); a("s_lshl_b32 s3, s32, 8")
    a("s_waitcnt lgkmcnt(0)")
    a(f"s_load_dword s96, s[26:27], {EP}")
    srd(48, "s4", "s5", 2304)
    a("s_add_u32 s44, s10, s3"); a("s_addc_u32 s45, s11, 0"); a(f"s_sub_u32 s46, {576*8192}, s3"); a("s_mov_b32 s47, 0x20000")
    hq.vm("xa", "buffer_load_dwordx4 v[20:23], v8, s[48:51], 0 offen")
    hq.vm("xb", "buffer_load_dwordx4 v[24:27], v8, s[48:51], 0 offen offset:512")
    hq.vm("xc", "buffer_load_dwordx4 v[28:31], v9, s[48:51], 0 offen offset:1024")
    hq.vm("xu0", "buffer_load_ushort v6, v10, s[48:51], 0 offen")
    hq.vm("xu1", "buffer_load_ushort v7, v10, s[48:51], 0 offen offset:128")
    hq.vm("xu2", "buffer_load_ushort v14, v10, s[48:51], 0 offen offset:1152")
    hq.vm("xu3", "buffer_load_ushort v15, v10, s[48:51], 0 offen offset:1280")
    for t in range(18):
        hq.vm(t, f"buffer_load_dwordx4 {vr(WQ+4*t)}, v11, s[44:47], s70 offen {polQ}")
        if t < 17: a("s_add_u32 s70, s70, 0x8000")
    if wo_first:
        wo_addr()
        for t in range(8): hq.vm(("wo", t), f"buffer_load_dwordx4 {vr(WO+4*t)}, v{vWO}, s[52:55], {'0' if t < 4 else 's67'} offen offset:{1152*(t%4)} {polO}")
    if B0: a("s_barrier")
    srd(56, "s26", "s27", WS_BYTES)
    masks()
    a("s_lshl_b32 s3, s33, 10"); a("s_add_u32 s66, s64, s3"); a(f"s_add_u32 s66, s66, {QW}")
    hq.wait("xu3")
    ln2_stats(20, LNF, 32, 33, 34)
    for r in (6, 7, 14, 15): a(f"v_lshlrev_b32 v{r}, 16, v{r}")
    normalize("v6", "v32", "v33", "s72", "s73", "s74"); normalize("v7", "v32", "v33", "s72", "s73", "s74")
    normalize("v14", "v32", "v33", "s75", "s76", "s77"); normalize("v15", "v32", "v33", "s75", "s76", "s77")
    a("s_waitcnt lgkmcnt(0)")
    if fast: a("s_lshl_b32 s3, s32, 2"); a("s_load_dword s74, s[24:25], s3")
    mktag()
    for t in range(18):
        A = 32 + 4*(t & 1); xm = 24 + (t & 1)
        s0, s1 = (6, 14) if t < 16 else (7, 15)
        a(f"v_mov_b32_dpp v{xm}, v{s0} row_newbcast:{t & 15} row_mask:0xf bank_mask:0x3")
        a(f"v_mov_b32_dpp v{xm}, v{s1} row_newbcast:{t & 15} row_mask:0xf bank_mask:0xc")
        for r in range(4): a(f"v_and_b32 v{A+r}, v{xm}, v{16+r}")
        hq.wait(t)
        a(f"v_mfma_f32_16x16x32_bf16 v[20:23], {vr(A)}, {vr(WQ+4*t)}, {'0' if t == 0 else 'v[20:23]'}")
    for r in range(4): a(f"v_add_u32 v{20+r}, 0x80, v{20+r}")
    if fast:
        a("s_getreg_b32 s3, hwreg(HW_REG_XCC_ID)"); a("s_add_u32 s3, s3, 1")
        a("s_waitcnt lgkmcnt(0)")
        a("s_cmp_eq_u32 s3, s74"); a(f"s_cselect_b32 s74, {0 if force_slow else XT2}, 0")
        a("s_cmp_eq_u32 s33, 7"); a(f"s_cselect_b32 s74, {XT2}, s74")
        a(f"v_xor_b32 v{vTag}, s74, v{vTag}")
    tag4(20)
    store2(f"buffer_store_dwordx4 v[20:23], v{vL16}, s[56:59], s66 offen", "s74")
    if fast: a(f"v_mov_b32 v{vTag}, s96")
    stamp(2)
    if ackstamp: a("s_waitcnt vmcnt(0)"); a("s_memrealtime s[86:87]")
    a("s_branch L_h_common")
    a("L_h_rest:")
    if fast:
        a("s_cmp_eq_u32 s33, 7"); a("s_cbranch_scc0 L_noann"); a("s_cmp_eq_u32 s30, 1"); a("s_cbranch_scc0 L_noann")
        a("s_getreg_b32 s3, hwreg(HW_REG_XCC_ID)"); a("s_add_u32 s3, s3, 1"); a("v_mov_b32 v4, s3"); a("s_lshl_b32 s3, s32, 2")
        a("s_waitcnt lgkmcnt(0)")
        srd(44, "s24", "s25", 256)
        a("s_mov_b64 exec, 1"); a(f"buffer_store_dword v4, v{vZ}, s[44:47], s3 offen sc1"); a("s_mov_b64 exec, -1")
        a("L_noann:")
    a("v_mov_b32 v4, -1"); a("v_mov_b32 v5, -1")
    a("s_mov_b64 exec, 0xffff"); a(f"ds_write_b64 v{vL8}, v[4:5] offset:{ML}"); a("s_mov_b64 exec, -1")
    if rk: a(f"ds_write_b32 v{vZ}, v{vZ} offset:{RK}")
    a("s_waitcnt lgkmcnt(0)")
    a(f"s_load_dword s96, s[26:27], {EP}")
    if wo_first: wo_addr(); wo_loads()
    if pf is not None:
        a("s_cmp_eq_u32 s33, 7"); a("s_cbranch_scc1 L_nopf")
        a("s_mul_i32 s3, s33, 3"); a("s_add_u32 s3, s3, s30"); a("s_sub_u32 s3, s3, 1")
        a("s_lshr_b32 s34, s32, 3"); a("s_mul_i32 s34, s34, 21"); a("s_add_u32 s34, s34, s3")
        a("s_and_b32 s35, s32, 7"); a("s_add_u32 s35, s35, 64")
        a("v_mul_u32_u24 v4, 9216, v2"); a("v_lshl_add_u32 v4, v3, 4, v4")
        a("v_lshrrev_b32 v5, 3, v0"); a("v_mul_u32_u24 v5, 9216, v5"); a("v_and_b32 v6, 7, v0"); a("v_lshl_add_u32 v5, v6, 4, v5")
        npf = [0]
        def pfl(v, so):
            a(f"buffer_load_dwordx4 v[208:211], {v}, s[36:39], {so} offen {pf}"); npf[0] += 1
            if pfD and npf[0] >= pfD: a(f"s_waitcnt vmcnt({pfD-1})")
        for (lo, hi) in (("s16", "s17"), ("s18", "s19")):
            srd(36, lo, hi, 576*9216)
            a("s_mul_i32 s70, s3, 36864"); a("s_lshl_b32 s71, s32, 8"); a("s_add_u32 s70, s70, s71")
            for n in range(7):
                pfl("v4", "s70")
                if n < 6: a(f"s_add_u32 s70, s70, {21*36864}")
            a("s_mul_i32 s70, s34, 73728"); a("s_lshl_b32 s71, s35, 7"); a("s_add_u32 s70, s70, s71")
            pfl("v5", "s70")
        a("s_mul_i32 s70, s32, 147456"); a("s_add_u32 s36, s20, s70"); a("s_addc_u32 s37, s21, 0"); a("s_mov_b32 s38, 147456")
        a("s_lshl_b32 s70, s3, 10")
        for n in range(7):
            pfl(f"v{vL16}", "s70")
            if n < 6: a(f"s_add_u32 s70, s70, {21*1024}")
        a("s_mul_i32 s70, s35, 73728"); a("s_add_u32 s36, s20, s70"); a("s_addc_u32 s37, s21, 0"); a("s_mov_b32 s38, 73728")
        a("s_lshl_b32 s70, s34, 10")
        pfl(f"v{vL16}", "s70")
        a("L_nopf:")
    a("s_waitcnt lgkmcnt(0)")
    a("s_barrier")
    srd(56, "s26", "s27", WS_BYTES)
    srd(48, "s4", "s5", 2304)
    masks()
    a("s_waitcnt lgkmcnt(0)")
    mktag()
    a("L_h_common:")
    if not wo_first: wo_addr()
    a("s_lshl_b32 s34, s30, 5"); a("v_lshl_add_u32 v4, v2, 3, s34"); a("v_cmp_gt_u32 vcc, s69, v3"); a(f"v_mov_b32 v10, {OOB}")
    a(f"s_mul_i32 s34, s33, {CW}"); a("v_and_b32 v11, 1, v2"); a("v_lshlrev_b32 v11, 2, v11"); a("v_lshl_add_u32 v11, v3, 3, v11"); a("v_add_u32 v11, s34, v11")
    a("v_lshrrev_b32 v5, 1, v2"); a("v_mul_u32_u24 v5, 18, v5"); a("v_lshrrev_b32 v12, 5, v11"); a("v_add_u32 v5, v5, v12"); a("v_lshlrev_b32 v5, 12, v5")
    a("v_and_b32 v11, 31, v11"); a("v_lshl_add_u32 v5, v11, 2, v5"); a("s_lshl_b32 s34, s32, 7"); a(f"s_add_u32 s34, s34, {YB}"); a("v_add_u32 v5, s34, v5")
    a(f"v_cndmask_b32 v{vYS}, v10, v5, vcc")
    if linA:
        a("s_lshl_b32 s3, s30, 11"); a("s_add_u32 s3, s3, s64"); a(f"v_add_u32 v5, s3, v{vL16}")
        a("v_lshlrev_b32 v11, 11, v2"); a("v_bfe_u32 v12, v0, 1, 1"); a("v_lshl_add_u32 v11, v12, 10, v11"); a("v_bfe_u32 v12, v0, 2, 2"); a("v_lshl_add_u32 v11, v12, 8, v11")
        a("v_and_b32 v12, 1, v0"); a(f"v_lshl_add_u32 v{vGM}, v12, 3, v11")
    else:
        a("v_lshlrev_b32 v5, 9, v3"); a("v_lshl_add_u32 v5, v4, 2, v5"); a("v_add_u32 v5, s64, v5")
    a("v_and_b32 v11, 7, v0"); a("v_cmp_gt_u32 s[98:99], 7, v11"); a(f"v_cndmask_b32 v{vGA}, v10, v5, s[98:99]")
    a("v_and_b32 v5, 1, v0"); a("v_lshlrev_b32 v5, 1, v5"); a(f"v_add_u32 v{vSA}, s60, v5"); a(f"v_add_u32 v{vSB}, s61, v5")
    a("s_lshl_b32 s34, s30, 10"); a(f"v_lshl_add_u32 v{vYP}, v0, 4, s34")
    a(f"s_add_u32 s65, s64, {OA + 9216}")
    if 2 <= strip <= 4:
        a("s_cmp_eq_u32 s33, 7"); a("s_cbranch_scc1 L_end")
        a("s_barrier")
        if strip >= 3: wo_loads()
        a("s_barrier"); a("s_barrier"); a("s_endpgm")
    a("s_cmp_eq_u32 s33, 7"); a("s_cbranch_scc1 L_svc_gather")
    a("s_cmp_eq_u32 s30, 0"); a("s_cbranch_scc0 L_h_bq")
    if qd_a: a(f"s_sleep {qd_a}")
    if qtrig: poll("L_pqt", [f"ds_read_b32 v12, v{vZ} offset:{ML + 64}"], lambda: a("v_cmp_eq_u32 vcc, -1, v12"), sleep=8, first_sleep=True, wait="s_waitcnt lgkmcnt(0)")
    def chkq():
        tagcheck((21, 23))
        if fast:
            a(f"s_xor_b32 s3, s96, {XT2}"); a("v_xor_b32 v5, s3, v21"); a("v_xor_b32 v6, s3, v23"); a("v_or_b32 v5, v5, v6"); a("v_cmp_ne_u32 s[74:75], 0, v5"); a("s_nop 0")
            a("s_cmp_eq_u64 s[74:75], 0"); a("s_cselect_b64 vcc, 0, vcc"); a("s_cselect_b32 s74, 1, 0")
    poll("L_pq", [f"buffer_load_dwordx4 v[20:23], v{vL16}, s[56:59], s65 offen {polQL}"], chkq, sleep=sleepQ, first_sleep=not qtrig)
    if fast: a("v_mov_b32 v4, s74"); a(f"ds_write_b32 v{vZ}, v4 offset:{SM}")
    a("v_mov_b32 v21, v22")
    a(f"ds_write_b64 v{vL8}, v[20:21] offset:{QL}")
    a("s_waitcnt lgkmcnt(0)")
    a("L_h_bq:")
    a("s_barrier")
    stamp(1)
    a(f"v_mov_b32 v{vNI}, 0xff800000")
    if wo_late:
        poll("L_pwo", [f"ds_read_b32 v12, v{vZ} offset:{ML}"], lambda: a("v_cmp_eq_u32 vcc, -1, v12"), sleep=32, first_sleep=True, wait="s_waitcnt lgkmcnt(0)")
    if not wo_first: wo_loads()
    if strip in (5, 6): a("s_barrier"); a("s_barrier"); a("s_endpgm")
    if rk:
        a("s_cmp_eq_u32 s30, 2"); a("s_cbranch_scc0 L_nork")
        a(f"ds_read_b32 v4, v{vZ} offset:{SM}"); a("s_waitcnt lgkmcnt(0)"); a("v_readfirstlane_b32 s74, v4")
        a("s_cmp_eq_u32 s74, 0"); a("s_cbranch_scc1 L_nork")
        a(f"s_add_u32 s35, s64, {OA + 10240}")
        for pt in range(len(rk_ms)):
            poll(f"L_prk{pt}", [f"ds_read_b32 v12, v{vZ} offset:{ML + 96}"], lambda: a(f"v_cmp_gt_i32 vcc, {pt}, v12"), sleep=8, first_sleep=True, wait="s_waitcnt lgkmcnt(0)")
            a("v_mov_b32 v4, 1"); a("s_mov_b64 exec, 1")
            a(f"buffer_atomic_add v4, v{vZ}, s[56:59], s35 offen offset:{4*pt} sc0")
            a("s_waitcnt vmcnt(0)"); a("v_readfirstlane_b32 s3, v4")
            a(f"s_cmp_lt_u32 s3, {rk_lead}"); a("s_cselect_b32 s34, 1, 0"); a(f"s_cmp_ge_u32 s3, {rk_lag}"); a("s_cselect_b32 s34, -1, s34")
            a("v_mov_b32 v4, s34"); a(f"ds_write_b32 v{vZ}, v4 offset:{RK}"); a("s_mov_b64 exec, -1")
        a("L_nork:")
    if vtouch:
        a("s_cmp_eq_u32 s30, 2"); a("s_cbranch_scc0 L_novt")
        a("s_lshl_b32 s3, s32, 21"); a("s_add_u32 s40, s8, s3"); a("s_addc_u32 s41, s9, 0"); a(f"s_mov_b32 s42, {66 << 20}"); a("s_mov_b32 s43, 0x20000")
        a("v_and_b32 v4, 1, v0"); a("v_lshlrev_b32 v4, 26, v4"); a("v_lshrrev_b32 v5, 1, v0"); a(f"v_lshl_add_u32 v4, v5, {21 - (vtouch - 1)}, v4")
        a(f"s_mov_b64 exec, {(1 << (1 << vtouch)) - 1}")
        a("buffer_load_dword v5, v4, s[40:43], 0 offen nt")
        a("s_mov_b64 exec, -1")
        a("L_novt:")
    a("s_cmp_lt_u32 s30, 2"); a("s_cbranch_scc0 L_h_b3")
    if fast: a(f"ds_read_b32 v4, v{vZ} offset:{SM}"); a("s_waitcnt lgkmcnt(0)"); a("v_readfirstlane_b32 s74, v4")
    a("s_lshl_b32 s3, s30, 4"); a("v_mov_b32 v10, s3")
    poll("L_pml", [f"ds_read_b128 v[20:23], v10 offset:{ML}"], lambda: anysent(range(20, 24), "v4"), sleep=32, first_sleep=True, wait="s_waitcnt lgkmcnt(0)")
    a("v_max_f32 v24, v20, v22")
    a("v_sub_f32 v26, v20, v24"); a("v_sub_f32 v27, v22, v24"); a("v_exp_f32 v26, v26"); a("v_exp_f32 v27, v27")
    a("v_mul_f32 v26, v26, v21"); a("v_fmac_f32 v26, v27, v23")
    a(f"v_mov_b32 v25, v{vTag}"); a(f"v_mov_b32 v27, v{vTag}")
    a("s_lshl_b32 s35, s30, 3"); a("s_add_u32 s35, s35, s33")
    if linA: a("s_lshl_b32 s3, s35, 4"); a("s_add_u32 s76, s64, s3")
    else: a("s_lshl_b32 s3, s35, 9"); a("s_add_u32 s76, s64, s3")
    a("s_lshl_b32 s3, s35, 4"); a("s_add_u32 s77, s64, s3"); a(f"s_add_u32 s77, s77, {OA + 8192}")
    if True:
        a("s_mov_b64 exec, 1")
        store2(f"buffer_store_dwordx4 v[24:27], v{vZ}, s[56:59], s77 offen", "s74")
        a("s_mov_b64 exec, -1")
        a("v_and_b32 v11, 7, v0"); a("v_lshlrev_b32 v11, 4, v11"); a(f"v_mov_b32 v10, {OOB}"); a("v_cndmask_b32 v11, v10, v11, s[98:99]")
        a("s_lshl_b32 s3, s30, 7"); a("s_add_u32 s77, s64, s3"); a(f"s_add_u32 s77, s77, {OA + 8192}")
        a("s_lshl_b32 s3, s30, 4"); a("v_mov_b32 v10, s3")
        poll("L_plt", [f"ds_read_b32 v12, v10 offset:{ML + 32}"], lambda: a("v_cmp_eq_u32 vcc, -1, v12"), sleep=16, first_sleep=True, wait="s_waitcnt lgkmcnt(0)")
        if hint:
            a("s_cmp_eq_u32 s30, 0"); a("s_cbranch_scc0 L_nohint")
            a(f"s_add_u32 s35, s64, {OA + 10368}"); a("s_mov_b64 exec, 1")
            store2(f"buffer_store_dword v{vTag}, v{vZ}, s[56:59], s35 offen", "s74")
            a("s_mov_b64 exec, -1")
            a("L_nohint:")
        def chk_ml(): tagcheck((13, 15)); a("s_and_b64 vcc, vcc, s[98:99]")
        poll("L_pgm", ["buffer_load_dwordx4 v[12:15], v11, s[56:59], s77 offen sc1"], chk_ml, sleep=32)
        a("v_mov_b32 v13, v14")
        a(f"v_cndmask_b32 v12, v{vNI}, v12, s[98:99]")
        a("v_mov_b32 v4, v12")
        oct_reduce(["v4"], "v_max_f32")
        a("v_sub_f32 v12, v12, v4"); a("v_exp_f32 v12, v12"); a("v_mul_f32 v13, v13, v12")
        oct_reduce(["v13"], "v_add_f32")
        a("v_rcp_f32 v5, v13"); a("v_fma_f32 v6, -v13, v5, 1.0"); a("v_fmac_f32 v5, v6, v5")
        a("v_sub_f32 v20, v20, v4"); a("v_sub_f32 v22, v22, v4"); a("v_exp_f32 v20, v20"); a("v_exp_f32 v22, v22")
        a(f"v_mul_f32 v{vC0}, v20, v5"); a(f"v_mul_f32 v{vC1}, v22, v5")
    a("s_lshl_b32 s3, s30, 10"); a(f"v_add_u32 v10, s3, v{vL8}")
    if not ackstamp: stamp(3)
    a("s_barrier")
    if strip in (7, 8): a("s_barrier"); a("s_endpgm")
    a(f"ds_read_b64 v[24:25], v10 offset:{OP}"); a(f"ds_read_b64 v[26:27], v10 offset:{OP + 512}")
    if mltail:
        a("s_mov_b64 exec, 1")
        a(f"buffer_store_dwordx2 v[28:29], v{vZ}, s[56:59], s77 offen sc1")
        a("s_mov_b64 exec, -1")
    stamp(4)
    a("s_waitcnt lgkmcnt(0)")
    a(f"v_mul_f32 v24, v24, v{vC0}"); a(f"v_mul_f32 v25, v25, v{vC0}")
    a(f"v_fmac_f32 v24, v26, v{vC1}"); a(f"v_fmac_f32 v25, v27, v{vC1}")
    a(f"v_perm_b32 v24, v24, v{vTag}, v{vSA}"); a(f"v_perm_b32 v25, v25, v{vTag}, v{vSB}")
    store2(f"buffer_store_dwordx2 v[24:25], v{vGM if linA else vL8}, s[56:59], s76 offen", "s74")
    a("s_branch L_gatherA")
    a("L_h_b3:")
    a("s_barrier")
    if strip in (7, 8): a("s_barrier"); a("s_endpgm")
    a("L_gatherA:")
    def mkA(r):
        x = [f"buffer_load_dwordx4 {vr(r)}, v{vGA}, s[56:59], 0 offen sc1", f"buffer_load_dwordx4 {vr(r+4)}, v{vGA}, s[56:59], 0 offen offset:{1024 if linA else 16} sc1"]
        if mltail: x = [f"buffer_load_dwordx2 {vr(r+8, 2)}, v{vGM}, s[56:59], 0 offen sc1"] + x
        return x
    def firstA(r):
        for t in range(8): strip_(24+t, r+t)
    ppoll("L_pollA", mkA, 8, 72, max(1, pipeA), firstA, lambda r: check4([r, r+4], "s[98:99]"), sleep=sleepA)
    stamp(5)
    if mltail:
        for pat in ("quad_perm:[1,0,3,2]", "quad_perm:[2,3,0,1]", "row_half_mirror"):
            a(f"v_add_f32_dpp v6, v6, v6 {pat} {DPPF}")
            if pat == "row_half_mirror": a("s_nop 0"); a("v_rcp_f32 v6, v6")
            for t in range(8): a(f"v_add_f32_dpp v{24+t}, v{24+t}, v{24+t} {pat} {DPPF}")
        for t in range(8): a(f"v_mul_f32 v{24+t}, v{24+t}, v6")
    else:
        for pat in ("quad_perm:[1,0,3,2]", "quad_perm:[2,3,0,1]", "row_half_mirror"):
            for t in range(8): a(f"v_add_f32_dpp v{24+t}, v{24+t}, v{24+t} {pat} {DPPF}")
    def pa(t):
        a(f"v_cvt_pk_bf16_f32 v{24+t}, v{24+t}, v{24+t}")
        for r in range(4): a(f"v_and_b32 v{40+4*t+r}, v{24+t}, v{16+r}")
    pa(0)
    for t in range(8):
        if t < 7: pa(t + 1)
        a(f"v_mfma_f32_16x16x32_bf16 v[20:23], {vr(40+4*t)}, {vr(WO+4*t)}, {'0' if t == 0 else 'v[20:23]'}")
    a(f"ds_write_b128 v{vYP}, v[20:23] offset:{YP}")
    a("s_waitcnt lgkmcnt(0)"); a("s_barrier")
    a("s_cmp_eq_u32 s78, 1"); a("s_cbranch_scc1 L_final")
    a("s_cmp_lg_u32 s30, 0"); a("s_cbranch_scc1 L_end")
    for w in range(1, 4): a(f"ds_read_b128 {vr(40+4*w)}, v{vL16} offset:{YP + 1024*w}")
    for w in range(1, 4):
        a(f"s_waitcnt lgkmcnt({3-w})")
        for r in range(4): a(f"v_add_f32 v{20+r}, v{20+r}, v{40+4*w+r}")
    tag4(20)
    a(f"buffer_store_dwordx4 v[20:23], v{vYS}, s[56:59], 0 offen {polYS}")
    stamp(6)
    if stamps:
        a("s_waitcnt vmcnt(0)"); stamp(7); store_stamps(1)
    a("s_endpgm")

    def lane_reduce4(b):
        a(f"v_permlane32_swap_b32 v{b}, v{b+1}"); a(f"v_permlane32_swap_b32 v{b+2}, v{b+3}")
        a(f"v_add_f32 v{b}, v{b}, v{b+1}"); a(f"v_add_f32 v{b+2}, v{b+2}, v{b+3}")
        a(f"v_permlane16_swap_b32 v{b}, v{b+2}")
        a(f"v_add_f32 v{b}, v{b}, v{b+2}")
        a(f"v_add_f32_dpp v{b}, v{b}, v{b} row_ror:8 {DPPF}")
    def f_loads(): return [f"buffer_load_dwordx4 {vr(160+4*k)}, v{vL16}, s[56:59], s72 offen offset:{1024*k} sc1" for k in range(4)]
    def f_process():
        for r in range(16): strip_(160+r, 160+r)
        for k in range(1, 4):
            for r in range(4): a(f"v_add_f32 v{160+r}, v{160+r}, v{160+4*k+r}")
        lane_reduce4(160)
        bf16r("v160", "v160"); silu("v160", "v4", "v5"); bf16r(f"v{vG}", "v160")
    a("L_final:")
    stamp(4)
    if Flate:
        check4([160, 164, 168, 172])
        if nofpub: a("s_branch L_pollF2_ok")
        a("s_cbranch_vccz L_pollF2_ok")
        poll("L_pollF2", f_loads(), lambda: check4([160, 164, 168, 172]), sleep=4)
        a("s_cmp_eq_u32 s68, 0"); a("s_cbranch_scc0 L_nobump")
        a("s_mov_b64 exec, 1"); a(f"s_mov_b32 s3, {EP}")
        a(f"buffer_store_dword v{vTag}, v{vZ}, s[56:59], s3 offen sc1")
        a("s_mov_b64 exec, -1")
        a("L_nobump:")
        f_process()
        stamp(3)
    mkB = lambda r: [f"buffer_load_dwordx4 {vr(r+4*k)}, v{vL16}, s[56:59], s71 offen offset:{1024*k} {polYL}" for k in range(4)]
    def firstB(b):
        for r in range(16): strip_(40+r, b+r)
    ppoll("L_pollB", mkB, 16, 112, max(1, pipeB), firstB, lambda r: check4([r, r+4, r+8, r+12]), bo=boB)
    stamp(5)
    for r in range(4): a(f"v_add_f32 v{40+r}, v{40+r}, v{44+r}")
    for r in range(4): a(f"v_add_f32 v{48+r}, v{48+r}, v{52+r}")
    for r in range(4): a(f"v_add_f32 v{40+r}, v{40+r}, v{48+r}")
    lane_reduce4(40)
    bf16r("v40", "v40")
    a(f"v_mul_f32 v40, v40, v{vG}")
    bf16r("v40", "v40")
    a(f"v_add_f32 v40, v40, v{vX}")
    a("v_cvt_pk_bf16_f32 v40, v40, v40")
    a(f"buffer_store_short v40, v{vOA}, s[44:47], s73 offen {polOut}")
    a("L_fin_end:")
    if probe_fix:
        a("L_pf:"); a("s_memrealtime s[94:95]"); a("s_waitcnt lgkmcnt(0)"); a("s_sub_u32 s94, s94, s92"); a(f"s_cmp_lt_u32 s94, {probe_fix*100}"); a("s_cbranch_scc1 L_pf")
    if probe_xcc:
        a("s_getreg_b32 s94, hwreg(HW_REG_XCC_ID)"); a("s_and_b32 s94, s94, 15"); a("s_and_b32 s95, s2, 7"); a("s_cmp_eq_u32 s94, s95"); a("s_cbranch_scc1 L_px")
        for _ in range(8): a("s_sleep 127")
        a("L_px:")
    if stamps:
        stamp(6); a("s_waitcnt vmcnt(0)"); stamp(7)
        a("s_cmp_eq_u32 s30, 1"); a("s_cbranch_scc0 L_end"); store_stamps(2)
    a("s_endpgm")

    def f_publish(sidx, lbl):
        if lbl: spin_init(lbl)
        a("v_and_b32 v4, 1, v2"); a("v_lshlrev_b32 v4, 2, v4"); a("v_lshl_add_u32 v4, v3, 3, v4")
        a("v_lshrrev_b32 v5, 1, v2"); a("v_mul_u32_u24 v5, 18, v5"); a("v_lshrrev_b32 v6, 5, v4"); a("v_add_u32 v5, v5, v6")
        a(f"v_mul_u32_u24 v5, {NF*1024}, v5"); a("v_and_b32 v4, 31, v4"); a("v_lshl_add_u32 v5, v4, 2, v5")
        a("v_cmp_gt_u32 vcc, 8, v3"); a(f"v_mov_b32 v4, {OOB}"); a("v_cndmask_b32 v6, v4, v5, vcc")
        a(f"s_lshl_b32 s3, {sidx}, 7"); a(f"s_add_u32 s3, s3, {FB}")
        for tau in range(5):
            tag4(ACC[tau])
            a(f"buffer_store_dwordx4 {vr(ACC[tau])}, v{6 if tau == 4 else 5}, s[56:59], s3 offen sc1")
            a(f"s_add_u32 s3, s3, {4*NF*1024}")
    def q_gather(lbl):
        a("s_lshl_b32 s3, s28, 10"); a("s_add_u32 s66, s64, s3"); a(f"s_add_u32 s66, s66, {QW}")
        a(f"v_lshlrev_b32 v12, 4, v0")
        a("v_and_b32 v4, 1, v2"); a("v_lshlrev_b32 v4, 4, v4"); a("v_lshl_add_u32 v4, v3, 5, v4"); a("v_lshrrev_b32 v5, 5, v0"); a("v_lshl_add_u32 v4, v5, 9, v4")
        a("s_lshl_b32 s3, s28, 10"); a("v_add_u32 v13, s3, v4")
        if qd_s and lbl == "L_pg0": a(f"s_sleep {qd_s}")
        if qd_s and lbl == "L_pg1":
            a("s_cmp_eq_u32 s30, 0"); a("s_cbranch_scc1 L_nosl"); a(f"s_sleep {qd_s}"); a("L_nosl:")
        def chk():
            check4([20])
            if fast:
                a(f"v_cmp_ne_u32 s[74:75], {XT2}, v4") if False else None
                a(f"v_xor_b32 v5, {XT2}, v4"); a("v_cmp_ne_u32 s[74:75], 0, v5"); a("s_nop 0")
                a("s_cmp_eq_u64 s[74:75], 0"); a("s_cselect_b64 vcc, 0, vcc"); a("s_cselect_b32 s74, 1, 0")
        poll(lbl, [f"buffer_load_dwordx4 v[20:23], v12, s[56:59], s66 offen {polQL}"], chk, sleep=sleepQ)
        if fast:
            a("v_mov_b32 v4, s74"); a("s_lshl_b32 s3, s28, 2"); a("v_mov_b32 v5, s3")
            a(f"ds_write_b32 v5, v4 offset:{SM}")
        for r in range(4): strip_(20+r, 20+r)
        a(f"ds_write_b128 v13, v[20:23] offset:{QP}")
        a("s_waitcnt lgkmcnt(0)"); a("s_barrier")
    a("L_svc_gather:")
    srd(44, "s22", "s23", 2304)
    a(f"v_mov_b32 v{vNI}, 0xff800000")
    a("s_cmp_eq_u32 s30, 0"); a("s_cbranch_scc1 L_s_g")
    a("s_cmp_eq_u32 s30, 3"); a("s_cbranch_scc1 L_s_g")
    a("s_sub_u32 s68, s30, 1"); a("s_lshl_b32 s68, s68, 5"); a("s_add_u32 s68, s68, s32")
    a("s_cmp_ge_u32 s68, 36"); a("s_cbranch_scc1 L_s_g")
    a("s_mov_b32 s78, 1")
    a(f"s_lshl_b32 s71, s68, 12"); a(f"s_add_u32 s72, s71, {FB}"); a(f"s_add_u32 s71, s71, {YB}")
    a("s_cmp_ge_u32 s68, 18"); a("s_cselect_b32 s73, 18, 0"); a("s_cselect_b32 s3, 1152, 0"); a("s_sub_u32 s73, s68, s73"); a("s_lshl_b32 s73, s73, 6"); a("s_add_u32 s73, s73, s3")
    a("v_and_b32 v4, 7, v0"); a("v_lshlrev_b32 v4, 3, v4"); a("v_and_b32 v5, 1, v2"); a("v_lshl_add_u32 v4, v5, 2, v4"); a("v_lshrrev_b32 v5, 1, v2"); a("v_lshl_add_u32 v4, v5, 1, v4")
    a("v_and_b32 v5, 8, v0"); a("v_lshlrev_b32 v5, 28, v5"); a(f"v_or_b32 v{vOA}, v4, v5")
    a(f"buffer_load_ushort v6, v4, s[48:51], s73 offen")
    if touchY is not None:
        for k in range(4): a(f"buffer_load_dwordx4 {vr(112+4*k)}, v{vL16}, s[56:59], s71 offen offset:{1024*k} {touchY}")
        for k in range(4): a(f"buffer_load_dwordx4 {vr(128+4*k)}, v{vL16}, s[56:59], s72 offen offset:{1024*k} {touchY}")
    a("s_waitcnt vmcnt(0)")
    a(f"v_lshlrev_b32 v{vX}, 16, v6")
    a("L_s_g:")
    q_gather("L_pg1")
    a("s_cmp_eq_u32 s30, 0"); a("s_cbranch_scc0 L_svc_common")
    for w in range(8): a(f"ds_read_b128 {vr(40+4*w)}, v{vL16} offset:{QP + 1024*w}")
    if fast: a(f"ds_read_b128 v[24:27], v{vZ} offset:{SM}"); a(f"ds_read_b128 v[28:31], v{vZ} offset:{SM + 16}")
    for w in range(1, 8):
        a(f"s_waitcnt lgkmcnt({7-w + (2 if fast else 0)})")
        for r in range(4): a(f"v_add_f32 v{40+r}, v{40+r}, v{40+4*w+r}")
    a("v_cvt_pk_bf16_f32 v20, v40, v41"); a("v_cvt_pk_bf16_f32 v22, v42, v43")
    if fast:
        a("s_waitcnt lgkmcnt(0)")
        a("v_min3_u32 v24, v24, v25, v26"); a("v_min3_u32 v24, v24, v27, v28"); a("v_min3_u32 v24, v24, v29, v30"); a("v_min_u32 v24, v24, v31")
        a("v_readfirstlane_b32 s74, v24"); a(f"s_mul_i32 s74, s74, {XT2}"); a("s_xor_b32 s3, s96, s74")
        a("v_mov_b32 v21, s3"); a("v_mov_b32 v23, s3")
    else:
        a("v_mov_b32 v21, s96"); a("v_mov_b32 v23, s96")
    if rk:
        a("v_mov_b32 v24, 0"); a("v_mov_b32 v25, 0"); a(f"s_add_u32 s35, s64, {OA + 10240}")
        a("s_mov_b64 exec, 15"); a(f"buffer_store_dwordx2 v[24:25], v{vL8}, s[56:59], s35 offen"); a("s_mov_b64 exec, -1"); a("s_waitcnt vmcnt(0)")
    store2(f"buffer_store_dwordx4 v[20:23], v{vL16}, s[56:59], s65 offen", "s74")
    stamp(1)
    a("L_svc_common:")
    if not wo_first: wo_loads()
    a("s_barrier")
    if touchOut:
        a("s_cmp_eq_u32 s78, 1"); a("s_cbranch_scc0 L_notouch")
        a(f"buffer_load_dwordx2 v[6:7], v{vOA}, s[44:47], s73 offen")
        a("L_notouch:")
    def fpub():
            a("s_cmp_eq_u32 s30, 0"); a("s_cbranch_scc0 L_nofp")
            for tau in range(5): a(f"ds_read_b128 {vr(ACC[tau])}, v{vL16} offset:{FP + 1024*tau}")
            for tau in range(5): a(f"ds_read_b128 {vr(44+4*tau)}, v{vL16} offset:{FP + 5120 + 1024*tau}")
            a("s_waitcnt lgkmcnt(0)")
            for tau in range(5):
                for r in range(4): a(f"v_add_f32 v{ACC[tau]+r}, v{ACC[tau]+r}, v{44+4*tau+r}")
            a("s_cmp_lt_u32 s32, 8"); a("s_cbranch_scc0 L_fp2")
            for tau in range(5): a(f"ds_read_b128 {vr(44+4*tau)}, v{vL16} offset:{FP + 10240 + 1024*tau}")
            a("s_waitcnt lgkmcnt(0)")
            for tau in range(5):
                for r in range(4): a(f"v_add_f32 v{ACC[tau]+r}, v{ACC[tau]+r}, v{44+4*tau+r}")
            a("L_fp2:")
            f_publish("s32", None)
            a("L_nofp:")
    if not Fpub_late and not nofpub: fpub()
    if not Flate:
        a("s_cmp_eq_u32 s78, 1"); a("s_cbranch_scc0 L_noF")
        poll("L_pollF", f_loads(), lambda: anysent(range(160, 176), "v4"), sleep=sleepF)
        stamp(3)
        f_process()
    a("L_noF:")
    if strip == 8: a("s_endpgm")
    if probeS:
        a("s_cmp_eq_u32 s30, 3"); a("s_cbranch_scc0 L_noprobe")
        a("s_mov_b64 exec, 0x7f")
        def chk():
            check4([24]); a("s_nop 0"); a("s_cmp_eq_u64 vcc, 0x7f"); a("s_cselect_b64 vcc, -1, 0")
        if hint:
            a(f"s_add_u32 s35, s64, {OA + 10368}")
            poll("L_probe", [f"buffer_load_dword v24, v{vZ}, s[56:59], s35 offen sc1"], lambda: a(f"v_cmp_ne_u32 vcc, v24, v{vTag}"), sleep=sleepP)
        else:
            poll("L_probe", [f"buffer_load_dwordx4 v[24:27], v{vGA}, s[56:59], 0 offen sc1"], chk, sleep=sleepP)
        a("s_mov_b64 exec, -1")
        a("L_noprobe:")
        a("s_barrier")
        if Fpub_late: fpub()
        if Flate:
            a("s_cmp_eq_u32 s78, 1"); a("s_cbranch_scc0 L_gatherA")
            for x in f_loads(): a(x)
    else:
        poll("L_pollS", mkA(80), lambda: anysent(range(80, 88), "v4"), sleep=sleepS)
    a("s_branch L_gatherA")

    a("L_svc_lo:")
    if 1 <= strip <= 3:
        if strip > 1 and B0: a("s_barrier")
        a("s_endpgm")
    if B0: a("s_barrier")
    a(f"v_mov_b32 v{vZ}, 0")
    a("s_lshl_b32 s64, s32, 14")
    ln2_offsets("v8", "v9")
    a("s_waitcnt lgkmcnt(0)")
    a(f"s_load_dword s96, s[26:27], {EP}")
    srd(48, "s4", "s5", 2304)
    a("buffer_load_dwordx4 v[20:23], v8, s[48:51], 0 offen"); a("buffer_load_dwordx4 v[24:27], v8, s[48:51], 0 offen offset:512")
    a("buffer_load_dwordx4 v[28:31], v9, s[48:51], 0 offen offset:1024")
    srd(56, "s26", "s27", WS_BYTES)
    masks()
    a("s_waitcnt vmcnt(0) lgkmcnt(0)")
    mktag()
    F = 200
    ln2_stats(20, F, 32, 33, 34)
    for (dst, s0, s1) in ((35, "s72", "s75"), (36, "s73", "s76"), (37, "s74", "s77")):
        a(f"v_mov_b32 v{dst}, {s0}"); a("s_mov_b32 exec_lo, 0"); a(f"v_mov_b32 v{dst}, {s1}"); a("s_mov_b32 exec_lo, -1")
    for k in range(24): normalize(f"v{F+k}", "v32", "v33", "v35", "v36", "v37")
    a("v_and_b32 v4, 31, v0"); a("v_lshrrev_b32 v5, 5, v0"); a("v_mul_u32_u24 v5, 2304, v5"); a("v_lshl_add_u32 v11, v4, 3, v5")
    for part in range(3):
        if part == 2: a("s_mov_b32 exec_lo, 0xff"); a("s_mov_b32 exec_hi, 0xff")
        for g in range(4):
            a(f"v_mov_b32 v32, v{F+8*part+g}"); a(f"v_mov_b32 v33, v{F+8*part+4+g}")
            a(f"ds_write_b64 v11, v[32:33] offset:{XT + g*576 + 256*part}")
    a("s_mov_b64 exec, -1")
    if not strip or strip >= 5: q_gather("L_pg0")
    else: a("s_waitcnt lgkmcnt(0)")
    a("s_cmp_eq_u32 s28, 3"); a("s_cbranch_scc1 L_lo_end")
    a("s_lshl_b32 s68, s32, 1"); a("s_add_u32 s68, s68, s28")
    a("s_cmp_lt_u32 s28, 2"); a("s_cbranch_scc1 L_ffn")
    a("s_add_u32 s68, s32, 64")
    a("s_cmp_ge_u32 s32, 8"); a("s_cbranch_scc1 L_lo_end")
    a("L_ffn:")
    FRB = 64
    assert FRB + 4*FR <= 200
    a("v_bfe_u32 v4, v0, 3, 1"); a("v_cmp_eq_u32 vcc, 1, v4")
    a("v_mov_b32 v4, s16"); a("v_mov_b32 v5, s18"); a("v_cndmask_b32 v60, v4, v5, vcc")
    a("v_mov_b32 v4, s17"); a("v_mov_b32 v5, s19"); a("v_cndmask_b32 v61, v4, v5, vcc")
    a("v_and_b32 v4, 7, v0"); a("v_lshlrev_b32 v4, 4, v4"); a("v_mul_u32_u24 v5, 9216, v2"); a("s_lshl_b32 s3, s68, 7"); a("v_add3_u32 v4, v4, v5, s3")
    a("v_add_co_u32 v60, vcc, v60, v4"); a("v_addc_co_u32 v61, vcc, 0, v61, vcc")
    a("s_mov_b32 s66, 36864"); a("s_mov_b32 s67, 0")
    a("s_mul_i32 s3, s68, 73728"); a("s_add_u32 s36, s20, s3"); a("s_addc_u32 s37, s21, 0"); srd(36, "s36", "s37", 73728)
    a("v_mul_u32_u24 v62, 1152, v2"); a("v_lshl_add_u32 v62, v3, 4, v62")
    a("v_cmp_gt_u32 vcc, 8, v3"); a(f"v_mov_b32 v4, {OOB}"); a("v_cndmask_b32 v63, v4, v62, vcc")
    fl = Log(); nf = [0]
    a("s_mov_b32 s69, 0")
    def issue_f():
        n = nf[0]; nf[0] += 1
        r = FRB + 4*(n % FR)
        if n < 144:
            fl.vm(n, f"global_load_dwordx4 {vr(r)}, v[60:61], off {polF}"); a("v_lshl_add_u64 v[60:61], v[60:61], 0, s[66:67]")
        else:
            m = n - 144; t, tau = divmod(m, 5)
            fl.vm(n, f"buffer_load_dwordx4 {vr(r)}, v{63 if tau == 4 else 62}, s[36:39], s69 offen offset:{256*tau} {polF}")
            if tau == 4: a("s_addk_i32 s69, 4608")
    if noffn:
        for r in range(20, 44): a(f"v_mov_b32 v{r}, 0")
        a("s_branch L_ffn_pub")
    for _ in range(FR): issue_f()
    a("v_bfe_u32 v4, v0, 3, 1"); a("v_lshl_add_u32 v4, v4, 2, v2"); a("v_mul_u32_u24 v11, 576, v4")
    a("s_lshl_b32 s3, s28, 9"); a("v_lshl_add_u32 v10, v4, 6, s3")
    a(f"ds_read_b128 v[40:43], v11 offset:{XT}")
    for t in range(144):
        q4, tt = divmod(t, 4)
        X = 40 + 4*(q4 & 1)
        if tt == 0:
            a("s_waitcnt lgkmcnt(0)")
            if q4 + 1 < 36: a(f"ds_read_b128 {vr(40 + 4*((q4+1) & 1))}, v11 offset:{XT + 16*(q4+1)}")
        A = 32 + 4*(t & 1)
        for r in range(4): a(f"v_and_b32 v{A+r}, v{X+tt}, v{16+r}")
        fl.wait(t)
        a(f"v_mfma_f32_16x16x32_bf16 v[20:23], {vr(A)}, {vr(FRB+4*(t%FR))}, {'0' if t == 0 else 'v[20:23]'}")
        if nf[0] < 224: issue_f()
    stamp(1)
    for r in range(4): bf16r(f"v{20+r}", f"v{20+r}")
    for r in range(4): a(f"v_mov_b32_dpp v{24+r}, v{20+r} row_ror:8 {DPPF}")
    for r in range(4):
        silu(f"v{20+r}", "v4", "v5"); bf16r(f"v{20+r}", f"v{20+r}")
        a(f"v_mul_f32 v{20+r}, v{20+r}, v{24+r}"); a(f"v_cvt_pk_bf16_f32 v{20+r}, v{20+r}, v{20+r}")
    a("v_lshrrev_b32 v4, 5, v0"); a("v_lshlrev_b32 v4, 8, v4"); a("v_and_b32 v5, 7, v0"); a("v_lshl_add_u32 v4, v5, 3, v4")
    a("v_and_b32 v5, 1, v2"); a("v_lshl_add_u32 v4, v5, 2, v4"); a("v_add_u32 v4, s3, v4")
    a("s_mov_b32 exec_lo, 0x00ff00ff"); a("s_mov_b32 exec_hi, 0x00ff00ff")
    for r in range(4): a(f"ds_write_b32 v4, v{20+r} offset:{HT + 64*r}")
    a("s_mov_b64 exec, -1")
    a("s_waitcnt lgkmcnt(0)")
    for k in range(4): a(f"ds_read_b128 {vr(44+4*k)}, v10 offset:{HT + 16*k}")
    a("s_waitcnt lgkmcnt(0)")
    for m in range(80):
        t, tau = divmod(m, 5); n = 144 + m
        if tau == 0:
            for r in range(4): a(f"v_and_b32 v{32+r}, v{44+t}, v{16+r}")
        fl.wait(n)
        a(f"v_mfma_f32_16x16x32_bf16 {vr(ACC[tau])}, v[32:35], {vr(FRB+4*(n%FR))}, {'0' if t == 0 else vr(ACC[tau])}")
        if nf[0] < 224: issue_f()
    stamp(3)
    if 1 <= strip <= 4: a("s_endpgm")
    if 5 <= strip <= 7: a("s_branch L_lo_end")
    a("L_ffn_pub:")
    if Fpre:
        a("s_mul_i32 s3, s28, 5120"); a("v_lshl_add_u32 v4, v0, 4, s3")
        for tau in range(5): a(f"ds_write_b128 v4, {vr(ACC[tau])} offset:{FP + 1024*tau}")
        a("s_waitcnt lgkmcnt(0)")
    else:
        f_publish("s68", "L_wi2")
    if stamps:
        a("s_cmp_eq_u32 s28, 0"); a("s_cbranch_scc0 L_lo_end"); store_stamps(0)
    a("L_lo_end:")
    if not strip or strip >= 5: a("s_barrier")
    a("L_end:")
    a("s_endpgm")
    if table is not None:
        assert sorted(table) == list(range(256))
        a(".p2align 6"); a(".type L_map,@object"); a("L_map:")
        for i in range(0, 256, 8): a(".long " + ", ".join(str(x) for x in table[i:i+8]))

    body, nfix = cfg_fix(hazard_pass(L))
    if nfix: print('cfg_fix inserted', nfix, file=sys.stderr)
    out = [HEADER.rstrip("\n"), f"; @launch grid=(256,1,1) block=(512,1,1) lds={LDS_BYTES}", DOC, '.amdgcn_target "amdgcn-amd-amdhsa--gfx950"']
    out += [("    " + x if not (x.endswith(":") or x.startswith(".")) else x) for x in body]
    out += ['.section .rodata,"a"', ".p2align 6", f".amdhsa_kernel {KN}",
            "  .amdhsa_next_free_vgpr 256", "  .amdhsa_next_free_sgpr 100", "  .amdhsa_accum_offset 256",
            "  .amdhsa_group_segment_fixed_size 0", "  .amdhsa_kernarg_size 96", "  .amdhsa_user_sgpr_count 2",
            "  .amdhsa_user_sgpr_kernarg_segment_ptr 1", "  .amdhsa_system_sgpr_workgroup_id_x 1",
            "  .amdhsa_float_denorm_mode_32 3", ".end_amdhsa_kernel"]
    return "\n".join(out) + "\n"

if __name__ == "__main__":
    cfgs = eval(open(sys.argv[1]).read())
    for n, c in cfgs.items():
        open(n + ".s", "w").write(gen(**c))
    print(" ".join("work/" + n + ".s" for n in cfgs))
```
